```python
import torch

def _softmax(x, axis=-1):
    return torch.softmax(x, dim=axis)

def _gelu(x):
    return torch.nn.functional.gelu(x, approximate='tanh')

def _silu(x):
    return torch.nn.functional.silu(x)

def _sigmoid(x):
    return torch.sigmoid(x)

def _layernorm(x, axis=-1, eps=1e-05):
    m = x.mean(dim=axis, keepdim=True)
    v = x.var(dim=axis, keepdim=True, unbiased=False)
    return (x - m) / torch.sqrt(v + eps)

def _scatter_add(tgt, idx, src, axis=0):
    return tgt.clone().index_add_(axis, idx, src)

def _segment_sum(src, seg, n):
    out = torch.zeros((n,) + src.shape[1:], dtype=src.dtype)
    return out.index_add_(0, seg, src)

def _pad(x, pw):
    flat = tuple((v for pair in reversed(pw) for v in pair))
    return torch.nn.functional.pad(x, flat)
kernel_name = 'adaLN_cond__sliding_block_cached__geglu_ffn__decode'

def setup_inputs():

    _w = lambda a: (lambda t: t.to(torch.bfloat16) if t.is_floating_point() else t)(torch.as_tensor(a))

    def _A_setup():
        B, Sq, D = (2, 1, 640)
        Hq, Hkv, Sk, Dh = (32, 32, 16384, 128)
        assert Hq % Hkv == 0, (Hq, Hkv)
        return {'x': _w((lambda *s: torch.randn(*s, dtype=torch.bfloat16) * 0.05)(B, Sq, D)), 'k_cache': _w((lambda *s: torch.randn(*s, dtype=torch.bfloat16) * 0.8)(B, Hkv, Sk, Dh)), 'v_cache': _w((lambda *s: torch.randn(*s, dtype=torch.bfloat16) * 1.6)(B, Hkv, Sk, Dh)), 'wq': _w((lambda *s: torch.randn(*s, dtype=torch.bfloat16) * 0.8)(D, Hq * Dh) * D ** (-0.5)), 'wo': _w((lambda *s: torch.randn(*s, dtype=torch.bfloat16) * 1.6)(Hq * Dh, D) * (Hq * Dh) ** (-0.5))}
    _A_in = _A_setup()

    def _B_setup():
        B, S, D, F = (2, 1, 640, 1728)
        return {'x': _w((lambda *s: torch.randn(*s, dtype=torch.bfloat16) * 0.05)(B, S, D)), 'w_gate': _w((lambda *s: torch.randn(*s, dtype=torch.bfloat16) * 0.1)(D, F)), 'w_up': _w((lambda *s: torch.randn(*s, dtype=torch.bfloat16) * 0.1)(D, F)), 'w_down': _w((lambda *s: torch.randn(*s, dtype=torch.bfloat16) * 0.1)(F, D))}
    _B_in = _B_setup()
    return {'A_x': _A_in['x'], 'A_k_cache': _A_in['k_cache'], 'A_v_cache': _A_in['v_cache'], 'A_wq': _A_in['wq'], 'A_wo': _A_in['wo'], 'B_x': _B_in['x'], 'B_w_gate': _B_in['w_gate'], 'B_w_up': _B_in['w_up'], 'B_w_down': _B_in['w_down'], 'c': _w((lambda *s: torch.randn(*s, dtype=torch.bfloat16) * 0.4)(2, 640) * 8.0), 'w_mod': _w((lambda *s: torch.randn(*s, dtype=torch.bfloat16) * 0.4)(640, 6 * 640) * 640 ** (-0.5) * 8.0)}

def reference(A_x, A_k_cache, A_v_cache, A_wq, A_wo, B_x, B_w_gate, B_w_up, B_w_down, c, w_mod):

    def _A_ref(x, k_cache, v_cache, wq, wo):
        B, Sq, D = x.shape
        Hq, Dh = (32, 128)
        Hkv, Sk = (k_cache.shape[1], k_cache.shape[2])
        W = min(4096, max(256, Sk // 4))
        rep = Hq // Hkv
        q = (lambda x, *d: x.permute(*d))((x @ wq).reshape(B, Sq, Hq, Dh), 0, 2, 1, 3)
        k = (lambda x, n, axis: torch.repeat_interleave(x, n, dim=axis))(k_cache[:, :, Sk - W:, :], rep, axis=1)
        v = (lambda x, n, axis: torch.repeat_interleave(x, n, dim=axis))(v_cache[:, :, Sk - W:, :], rep, axis=1)
        scores = torch.einsum('bhqd,bhkd->bhqk', q, k) * Dh ** (-0.5)
        p = _softmax(scores, axis=-1)
        o = torch.einsum('bhqk,bhkd->bhqd', p, v)
        return (lambda x, *d: x.permute(*d))(o, 0, 2, 1, 3).reshape(B, Sq, Hq * Dh) @ wo

    def _B_ref(x, w_gate, w_up, w_down):
        return _gelu(x @ w_gate) * (x @ w_up) @ w_down
    x = A_x
    mod = (_silu(c) @ w_mod).reshape(c.shape[0], 6, 1, -1)
    sa, ca, ga, sb, cb, gb = (mod[:, 0].clone(), mod[:, 1].clone(), mod[:, 2].clone(), mod[:, 3].clone(), mod[:, 4].clone(), mod[:, 5].clone())
    h = _layernorm(x, axis=-1) * (1 + ca) + sa
    x = x + ga * _A_ref(h, A_k_cache, A_v_cache, A_wq, A_wo)
    h = _layernorm(x, axis=-1) * (1 + cb) + sb
    x = x + gb * _B_ref(h, B_w_gate, B_w_up, B_w_down)
    return x
```

```python
import re

class Asm:
    def __init__(self):
        self.lines = []
        self._uid = 0
    def __call__(self, s):
        for ln in s.split("\n"):
            ln = ln.strip()
            if ln:
                self.lines.append(ln)
    def label(self, name):
        self.lines.append(name + ":")
    def uid(self, base="L"):
        self._uid += 1
        return f"{base}_{self._uid}"
    def comment(self, s):
        self.lines.append("; " + s)

_reg = re.compile(r"^(v|s|a)(\d+)$")
_rng = re.compile(r"^(v|s|a)\[(\d+):(\d+)\]$")

def regs_of(tok):
    tok = tok.strip()
    neg = tok.lstrip("-")
    if neg.startswith("abs(") and neg.endswith(")"):
        neg = neg[4:-1]
    if neg.startswith("|") and neg.endswith("|"):
        neg = neg[1:-1]
    m = _reg.match(neg)
    if m:
        return {(m.group(1), int(m.group(2)))}
    m = _rng.match(neg)
    if m:
        return {(m.group(1), i) for i in range(int(m.group(2)), int(m.group(3)) + 1)}
    if neg == "vcc":
        return {("s", "vcc")}
    if neg in ("vcc_lo", "vcc_hi"):
        return {("s", "vcc")}
    if neg == "exec":
        return {("s", "exec")}
    if neg == "m0":
        return {("s", "m0")}
    return set()

TRANS = ("v_exp_f32", "v_log_f32", "v_rcp_f32", "v_rsq_f32", "v_sqrt_f32", "v_sin_f32", "v_cos_f32", "v_rcp_iflag_f32")
DPP_MODS = ("quad_perm", "row_shr", "row_shl", "row_ror", "row_newbcast", "row_mirror", "row_half_mirror", "row_bcast", "wave_")

class Ins:
    def __init__(self, text):
        self.text = text
        code = text.split(";")[0].strip()
        parts = code.split(None, 1)
        self.op = parts[0]
        rest = parts[1] if len(parts) > 1 else ""
        toks = []
        depth = 0
        cur = ""
        for ch in rest:
            if ch == "[":
                depth += 1
            if ch == "]":
                depth -= 1
            if ch == "," and depth == 0:
                toks.append(cur.strip()); cur = ""
            else:
                cur += ch
        if cur.strip():
            toks.append(cur.strip())
        mods = ""
        if toks:
            last = toks[-1].split(None, 1)
            if len(last) > 1:
                toks[-1] = last[0]; mods = last[1]
        self.toks, self.mods = toks, mods
        op = self.op
        self.is_mfma = op.startswith("v_mfma")
        self.is_valu = op.startswith("v_") and not self.is_mfma
        self.is_vmem = op.startswith(("global_", "buffer_", "flat_"))
        self.is_ds = op.startswith("ds_")
        self.is_salu = op.startswith("s_")
        self.is_dpp = self.is_valu and any(m in code for m in DPP_MODS)
        self.is_trans = any(op.startswith(t) for t in TRANS)
        self.is_dot = op.startswith("v_dot")
        self.is_swap = op.startswith("v_permlane")
        self.is_rdlane = op.startswith(("v_readlane", "v_readfirstlane"))
        self.is_lds_dma = self.is_vmem and "_lds_" in op
        R = [regs_of(t) for t in toks]
        self.vdst = set(); self.vsrc = set(); self.sdst = set(); self.ssrc = set()
        self.mfC = set(); self.mfAB = set()
        def split(rs):
            return {r for r in rs if r[0] in "va"}, {r for r in rs if r[0] == "s"}
        if self.is_mfma:
            self.vdst = R[0]; self.mfAB = R[1] | R[2]; self.mfC = R[3] if len(R) > 3 else set()
            self.vsrc = self.mfAB | self.mfC
            self.passes = 8 if "x4_f32" in op else 4
            self.sgemm = "x4_f32" in op
        elif self.is_valu:
            n = 1
            d = R[0] if R else set()
            dv, ds = split(d)
            self.vdst |= dv; self.sdst |= ds
            if op.startswith(("v_add_co", "v_sub_co", "v_addc_co", "v_subb_co", "v_div_scale", "v_mad_u64")):
                self.sdst |= split(R[1])[1]; n = 2
            for r in R[n:]:
                sv, ss = split(r)
                self.vsrc |= sv; self.ssrc |= ss
            if op.startswith(("v_fmac", "v_dot2c", "v_writelane")) or self.is_dpp:
                self.vsrc |= dv
            if self.is_swap:
                self.vdst |= split(R[1])[0]; self.vsrc |= dv
            if op.startswith("v_cndmask") and len(toks) == 3:
                self.ssrc.add(("s", "vcc"))
            if op.startswith("v_cmpx"):
                raise ValueError("v_cmpx is not handled")
        elif self.is_vmem:
            if "_load" in op and not self.is_lds_dma:
                self.vdst = split(R[0])[0]
                srcs = R[1:]
            elif "atomic" in op and "sc0" in mods:
                self.vdst = split(R[0])[0]; srcs = R[1:]
            else:
                srcs = R
            for r in srcs:
                sv, ss = split(r)
                self.vsrc |= sv; self.ssrc |= ss
            self.store_wide = set()
            if "_store_dwordx4" in op or "_store_dwordx3" in op:
                self.store_wide = split(R[1])[0] if op.startswith("global") else split(R[0])[0]
        elif self.is_ds:
            if "_read" in op or "_rtn" in op or "bpermute" in op or "swizzle" in op:
                self.vdst = split(R[0])[0]; srcs = R[1:]
            else:
                srcs = R
            for r in srcs:
                self.vsrc |= split(r)[0]
        elif self.is_salu:
            nodst = op.startswith(("s_cmp", "s_waitcnt", "s_nop", "s_branch", "s_cbranch", "s_barrier", "s_endpgm",
                                   "s_sleep", "s_setprio", "s_bitcmp"))
            if R and not nodst:
                self.sdst = split(R[0])[1]
                srcs = R[1:]
            else:
                srcs = R
            for r in srcs:
                self.ssrc |= split(r)[1]
    def states(self):
        if self.op == "s_nop":
            return int(self.toks[0], 0) + 1
        return 1

def need(p, c):
    n = 0
    if p.is_valu:
        if p.vdst:
            if c.is_dpp and (p.vdst & c.vsrc): n = max(n, 2)
            if c.is_mfma and (p.vdst & c.vsrc): n = max(n, 2)
            if c.is_swap and (p.vdst & c.vsrc): n = max(n, 2)
            if c.is_rdlane and (p.vdst & c.vsrc): n = max(n, 1)
            if p.is_trans and c.is_valu and not c.is_trans and (p.vdst & c.vsrc): n = max(n, 1)
            if p.is_trans and c.is_valu and (p.vdst & c.vsrc): n = max(n, 1)
            if p.is_dot and (c.is_valu or c.is_mfma or c.is_vmem or c.is_ds) and (p.vdst & (c.vsrc | c.vdst)):
                same_acc = c.is_dot and c.op == p.op and not (p.vdst & (c.vsrc - c.vdst)) and p.op.startswith("v_dot2c")
                if not same_acc: n = max(n, 3)
        if p.sdst:
            if c.is_valu and (p.sdst & c.ssrc): n = max(n, 4 if c.is_rdlane or c.op.startswith("v_writelane") else 2)
            if c.is_vmem and (p.sdst & c.ssrc): n = max(n, 5)
            if ("s", "exec") in p.sdst: n = max(n, 5)
    if p.is_mfma:
        xdl = not p.sgemm
        P = p.passes
        d = p.vdst
        if c.is_mfma:
            if d & c.mfAB: n = max(n, (8 if P == 4 else 12) if xdl else 10)
            if d & c.mfC:
                exact = (c.mfC == d) and (c.passes == P) and (c.sgemm == p.sgemm)
                if not exact: n = max(n, (6 if P == 4 else 10))
            if (d & c.vdst) and not (c.mfC == d): n = max(n, (8 if P == 4 else 12))
        else:
            if d & (c.vsrc | c.vdst): n = max(n, (8 if P == 4 else 12) if xdl else 10)
            if c.is_valu and (p.mfC & c.vdst) and xdl: n = max(n, 3 if P == 4 else 7)
    if p.is_vmem and getattr(p, "store_wide", None):
        if p.store_wide & c.vdst: n = max(n, 2)
    if p.is_salu and ("s", "m0") in p.sdst and c.is_lds_dma: n = max(n, 1)
    return n

MAXAGE = 14

def fix_hazards(lines):
    items = []
    for ln in lines:
        if ln.startswith(";") or ln.startswith("."):
            items.append(("c", ln))
        elif ln.endswith(":"):
            items.append(("l", ln[:-1]))
        else:
            items.append(("i", Ins(ln)))
    incoming = {}
    for _ in range(4):
        out = []
        state = []
        new_incoming = {}
        dead = False
        for kind, x in items:
            if kind == "c":
                out.append(x); continue
            if kind == "l":
                merged = {} if dead else {id(p): (p, a) for p, a in state}
                for p, a in incoming.get(x, []):
                    if id(p) not in merged or merged[id(p)][1] > a:
                        merged[id(p)] = (p, a)
                state = list(merged.values()); dead = False
                out.append(x + ":"); continue
            req = 0
            for p, a in state:
                r = need(p, x) - a
                if r > req: req = r
            if req > 0:
                k = req
                while k > 0:
                    s = min(k, 16)
                    out.append(f"s_nop {s-1}")
                    k -= s
                state = [(p, a + req) for p, a in state]
            out.append(x.text)
            st = x.states()
            state = [(p, a + st) for p, a in state if a + st <= MAXAGE]
            state.append((x, 0))
            if x.op.startswith(("s_branch", "s_cbranch")):
                new_incoming.setdefault(x.toks[0], []).extend(state)
                if x.op == "s_branch": dead = True; state = []
            if x.op == "s_endpgm": dead = True; state = []
        if {k: sorted((id(p), a) for p, a in v) for k, v in new_incoming.items()} == \
           {k: sorted((id(p), a) for p, a in v) for k, v in incoming.items()}:
            break
        incoming = new_incoming
    return out
```

```python
import sys
from asmlib import Asm, fix_hazards

NAME = "adaLN_cond__sliding_block_cached__geglu_ffn__decode"
KN = NAME + "_kernel"

FLAGS = 0x1000
OBBASE = 0x4000
STRIDE = 6144
OB_MOD, OB_QP, OB_WO, OB_GU, OB_Y, OB_OP, OB_ML, OB_X1 = 0, 1024, 2048, 3072, 4096, 5120, 5632, 5760
TSBASE = 0x400000

C_MODT, C_WQT, C_H, C_QV, C_FL, C_EP = 0, 4, 8, 12, 16, 20
L_MLW, L_MG = 64, 128
L_Q, L_ZERO = 256, 512
L_SC = 1024
L_XH, L_XO, L_XH2, L_XA = 2048, 2560, 3072, 3584
L_RED = 4096
L_A, L_B, L_C = 8192, 57344, 90112
L_GATE, L_UP, L_DOWN = L_A, L_A + 16384, L_A + 32768
LDS_BYTES = 122880

LOG2E = 0x3FB8AA3B
SCALE = 0x3DB504F3
INV640 = 0x3ACCCCCD
EPS = 0x3727C5AC
HI = 0xFFFF0000

DEF = dict(depth=4, q0=20, p0=46, prof=0, nt=1, wnt=1, bound_g=40000, bound_l=400000,
           qsleep=4, bulkdepth=4, prio=3)


def v(i, n=1):
    return f"v{i}" if n == 1 else f"v[{i}:{i+n-1}]"


def s(i, n=1):
    return f"s{i}" if n == 1 else f"s[{i}:{i+n-1}]"


class Gen:
    def __init__(self, **kw):
        self.o = dict(DEF); self.o.update(kw)
        self.a = Asm()
        self.nts = 0

    def ts(self, i):
        if self.o["prof"]:
            self.a(f"s_memrealtime s[{60+2*i}:{61+2*i}]")

    def spin_lds(self, off, value, code, vz, vt):
        a = self.a
        L = a.uid("Llds")
        a(f"s_mov_b32 s19, {code}")
        a("s_mov_b32 s18, 0")
        a.label(L)
        a(f"ds_read_b32 {v(vt)}, {v(vz)} offset:{off}")
        a("s_add_u32 s18, s18, 1")
        a(f"s_cmp_gt_u32 s18, {self.o['bound_l']}")
        a("s_cbranch_scc1 L_fail")
        a("s_waitcnt lgkmcnt(0)")
        a(f"v_readfirstlane_b32 s8, {v(vt)}")
        a(f"s_cmp_lt_u32 s8, {value}")
        a(f"s_cbranch_scc1 {L}")

    def lds_arrive(self, off, vz, vt):
        a = self.a
        a(f"v_mov_b32 {v(vt)}, 1")
        a("s_mov_b64 s[16:17], exec")
        a("s_mov_b64 exec, 1")
        a(f"ds_add_u32 {v(vz)}, {v(vt)} offset:{off}")
        a("s_mov_b64 exec, s[16:17]")

    def gather(self, loads, width, code, vt, base="s[4:5]", sleep=0):
        a = self.a
        L = a.uid("Lg")
        a(f"s_mov_b32 s19, {code}")
        a("s_mov_b32 s18, 0")
        Ltop = L
        if sleep:
            Lfirst = a.uid("Lgf")
            a(f"s_branch {Lfirst}")
            a.label(Ltop)
            a(f"s_sleep {sleep}")
            a.label(Lfirst)
        else:
            a.label(Ltop)
        for d, o, imm, em in loads:
            if em is not None:
                a("s_mov_b64 s[16:17], exec")
                a(f"s_mov_b32 exec_lo, {em & 0xFFFFFFFF}")
                a(f"s_mov_b32 exec_hi, {em >> 32}")
            a(f"global_load_dwordx{width} {v(d, width)}, {v(o)}, {base} offset:{imm} sc1")
            if em is not None:
                a("s_mov_b64 exec, s[16:17]")
        a("s_add_u32 s18, s18, 1")
        a(f"s_cmp_gt_u32 s18, {self.o['bound_g']}")
        a("s_cbranch_scc1 L_fail")
        a("s_waitcnt vmcnt(0)")
        regs = [d + i for d, _, _, _ in loads for i in range(width)]
        if len(regs) == 2:
            a(f"v_max_u32 {v(vt)}, {v(regs[0])}, {v(regs[1])}")
        else:
            a(f"v_max3_u32 {v(vt)}, {v(regs[0])}, {v(regs[1])}, {v(regs[2])}")
            rest = regs[3:]
            while rest:
                if len(rest) >= 2:
                    a(f"v_max3_u32 {v(vt)}, {v(vt)}, {v(rest[0])}, {v(rest[1])}"); rest = rest[2:]
                else:
                    a(f"v_max_u32 {v(vt)}, {v(vt)}, {v(rest[0])}"); rest = rest[1:]
        a(f"v_cmp_eq_u32 vcc, -1, {v(vt)}")
        a(f"s_cbranch_vccnz {Ltop}")

    def round1(self, r, t=None):
        a = self.a
        a(f"v_cvt_pk_bf16_f32 {v(r)}, {v(r)}, {v(r)}")
        a(f"v_and_b32 {v(r)}, 0x{HI:x}, {v(r)}")

    def unpack(self, dlo, dhi, src):
        a = self.a
        if dlo == src:
            a(f"v_and_b32 {v(dhi)}, 0x{HI:x}, {v(src)}")
            a(f"v_lshlrev_b32 {v(dlo)}, 16, {v(src)}")
        else:
            a(f"v_lshlrev_b32 {v(dlo)}, 16, {v(src)}")
            a(f"v_and_b32 {v(dhi)}, 0x{HI:x}, {v(src)}")

    def round4(self, r, t):
        a = self.a
        a(f"v_cvt_pk_bf16_f32 {v(t)}, {v(r)}, {v(r+1)}")
        a(f"v_cvt_pk_bf16_f32 {v(t+1)}, {v(r+2)}, {v(r+3)}")
        self.unpack(r, r + 1, t)
        self.unpack(r + 2, r + 3, t + 1)

    def allreduce32(self, regs, op, t):
        a = self.a
        for mod in ("quad_perm:[1,0,3,2]", "quad_perm:[2,3,0,1]", "row_half_mirror", "row_mirror"):
            for r in regs:
                a(f"{op}_dpp {v(r)}, {v(r)}, {v(r)} {mod} row_mask:0xf bank_mask:0xf")
        for i, r in enumerate(regs):
            a(f"v_mov_b32 {v(t+i)}, {v(r)}")
        for i, r in enumerate(regs):
            a(f"v_permlane16_swap_b32 {v(r)}, {v(t+i)}")
        for i, r in enumerate(regs):
            a(f"{op} {v(r)}, {v(r)}, {v(t+i)}")

    def ln_stats(self, X, mu, rs, t):
        a = self.a
        ones = t
        a(f"v_mov_b32 {v(ones)}, 0x3f803f80")
        a(f"v_mov_b32 {v(mu)}, 0")
        a(f"v_mov_b32 {v(rs)}, 0")
        for i in range(10):
            a(f"v_dot2c_f32_bf16 {v(mu)}, {v(X+i)}, {v(ones)}")
            a(f"v_dot2c_f32_bf16 {v(rs)}, {v(X+i)}, {v(X+i)}")
        self.allreduce32([mu, rs], "v_add_f32", t)
        a(f"v_mul_f32 {v(mu)}, 0x{INV640:x}, {v(mu)}")
        a(f"v_mul_f32 {v(rs)}, 0x{INV640:x}, {v(rs)}")
        a(f"v_fma_f32 {v(rs)}, -{v(mu)}, {v(mu)}, {v(rs)}")
        a(f"v_max_f32 {v(rs)}, 0, {v(rs)}")
        a(f"v_cvt_pk_bf16_f32 {v(t)}, {v(mu)}, {v(rs)}")
        self.unpack(mu, rs, t)
        a(f"v_add_f32 {v(rs)}, 0x{EPS:x}, {v(rs)}")
        self.round1(rs)
        a(f"v_sqrt_f32 {v(rs)}, {v(rs)}")
        self.round1(rs)
        a(f"v_rcp_f32 {v(rs)}, {v(rs)}")

    def ln_apply(self, X, mu, rs, y, t):
        a = self.a
        self.unpack(y, y + 1, X)
        self.unpack(y + 2, y + 3, X + 1)
        for i in range(4):
            a(f"v_sub_f32 {v(y+i)}, {v(y+i)}, {v(mu)}")
        self.round4(y, t)
        for i in range(4):
            a(f"v_mul_f32 {v(y+i)}, {v(y+i)}, {v(rs)}")
        self.round4(y, t)

    def modulate(self, y, c1, sh, t):
        a = self.a
        for i in range(4):
            a(f"v_mul_f32 {v(y+i)}, {v(y+i)}, {v(c1+i)}")
        self.round4(y, t)
        for i in range(4):
            a(f"v_add_f32 {v(y+i)}, {v(y+i)}, {v(sh+i)}")
        a(f"v_cvt_pk_bf16_f32 {v(t)}, {v(y)}, {v(y+1)}")
        a(f"v_cvt_pk_bf16_f32 {v(t+1)}, {v(y+2)}, {v(y+3)}")

    def sum4x4(self, d, nload, stride=4):
        a = self.a
        for k in range(1, nload):
            for i in range(0, 4, 2):
                a(f"v_pk_add_f32 {v(d+i,2)}, {v(d+i,2)}, {v(d+stride*k+i,2)}")

    def dma_loop(self, base, voff, gstep, total, lds, hwreg, nw):
        a = self.a
        nt = " nt" if self.o["wnt"] else ""
        L = a.uid("Ldma")
        a(f"s_mul_i32 s10, {s(hwreg)}, {gstep}")
        a(f"s_add_u32 {s(base)}, {s(base)}, s10")
        a(f"s_addc_u32 {s(base+1)}, {s(base+1)}, 0")
        a(f"s_lshl_b32 s11, {s(hwreg)}, 10")
        a(f"s_add_u32 s11, s11, {lds}")
        a(f"s_mov_b32 s12, {s(hwreg)}")
        a.label(L)
        a("s_mov_b32 m0, s11")
        a(f"s_add_u32 s11, s11, {nw*1024}")
        a(f"global_load_lds_dwordx4 {v(voff)}, {s(base,2)}{nt}")
        a(f"s_add_u32 {s(base)}, {s(base)}, {nw*gstep}")
        a(f"s_addc_u32 {s(base+1)}, {s(base+1)}, 0")
        a(f"s_add_u32 s12, s12, {nw}")
        a(f"s_cmp_lt_u32 s12, {total}")
        a(f"s_cbranch_scc1 {L}")

    def dma_paced(self, base, voff, gstep, total, lds, hwreg, nw):
        a = self.a
        nt = " nt" if self.o["wnt"] else ""
        L = a.uid("Ldmp")
        a(f"s_mul_i32 s10, {s(hwreg)}, {gstep}")
        a(f"s_add_u32 {s(base)}, {s(base)}, s10")
        a(f"s_addc_u32 {s(base+1)}, {s(base+1)}, 0")
        a(f"s_lshl_b32 s11, {s(hwreg)}, 10")
        a(f"s_add_u32 s11, s11, {lds}")
        a(f"s_mov_b32 s12, {s(hwreg)}")
        a.label(L)
        a("s_mov_b32 m0, s11")
        a(f"s_add_u32 s11, s11, {nw*1024}")
        a(f"s_waitcnt vmcnt({self.o['bulkdepth']-1})")
        a(f"global_load_lds_dwordx4 {v(voff)}, {s(base,2)}{nt}")
        a(f"s_add_u32 {s(base)}, {s(base)}, {nw*gstep}")
        a(f"s_addc_u32 {s(base+1)}, {s(base+1)}, 0")
        a(f"s_add_u32 s12, s12, {nw}")
        a(f"s_cmp_lt_u32 s12, {total}")
        a(f"s_cbranch_scc1 {L}")

    def tr_frags(self, dst, vaddr, lds, pitch, nks, extra=0):
        a = self.a
        for ks in range(nks):
            for half in range(2):
                off = lds + extra + (32 * ks + 4 * half) * pitch
                a(f"ds_read_b64_tr_b16 {v(dst+4*ks+2*half,2)}, {v(vaddr)} offset:{off}")

    def tr_addr(self, d, lane, pitch, t):
        a = self.a
        sh = 8 if pitch == 256 else 7
        a(f"v_lshrrev_b32 {v(t)}, 4, {v(lane)}")
        a(f"v_lshlrev_b32 {v(d)}, {sh+3}, {v(t)}")
        a(f"v_bfe_u32 {v(t)}, {v(lane)}, 2, 2")
        a(f"v_lshl_add_u32 {v(d)}, {v(t)}, {sh}, {v(d)}")
        a(f"v_and_b32 {v(t)}, 3, {v(lane)}")
        a(f"v_lshl_add_u32 {v(d)}, {v(t)}, 3, {v(d)}")

    def bfrag_addr(self, d, lane, rowbytes, t):
        a = self.a
        a(f"v_and_b32 {v(t)}, 1, {v(lane)}")
        a(f"v_mul_u32_u24 {v(d)}, {rowbytes}, {v(t)}")
        a(f"v_lshrrev_b32 {v(t)}, 4, {v(lane)}")
        a(f"v_lshl_add_u32 {v(d)}, {v(t)}, 4, {v(d)}")

    def epilogue_ts(self, nts):
        a = self.a
        if not self.o["prof"]:
            return
        a("s_waitcnt lgkmcnt(0)")
        a("s_load_dwordx2 s[12:13], s[0:1], 104")
        a("s_lshl_b32 s10, s2, 4"); a("s_add_u32 s10, s10, s3"); a("s_lshl_b32 s10, s10, 6")
        a(f"s_add_u32 s10, s10, {TSBASE}")
        a("s_mov_b64 exec, 1")
        a("v_mov_b32 v0, s10")
        a("s_waitcnt lgkmcnt(0)")
        for i in range(nts):
            a(f"v_mov_b32 v1, s{60+2*i}")
            a(f"global_store_dword v0, v1, s[12:13] offset:{4*i}")
            a("s_nop 1")

    def stream(self):
        a, o = self.a, self.o
        D = o["depth"]
        nt = " nt" if o["nt"] else ""
        LANE, VK, VV, T0 = 0, 1, 2, 3
        A, S, DQ, RING = 8, 24, 32, 40
        MASK, BT, DP = 8, 12, 20
        a("s_load_dwordx4 s[4:7], s[0:1], 8")
        a("s_barrier")
        self.ts(0)
        a(f"v_and_b32 {v(VK)}, 3, {v(LANE)}")
        a(f"v_lshlrev_b32 {v(VK)}, 4, {v(VK)}")
        a(f"v_lshrrev_b32 {v(T0)}, 4, {v(LANE)}")
        a(f"v_lshl_add_u32 {v(VK)}, {v(T0)}, 6, {v(VK)}")
        a(f"v_bfe_u32 {v(T0)}, {v(LANE)}, 2, 2")
        a(f"v_lshl_add_u32 {v(VK)}, {v(T0)}, 10, {v(VK)}")
        a(f"v_lshlrev_b32 {v(VV)}, 4, {v(LANE)}")
        a("s_lshr_b32 s8, s2, 2"); a("s_lshl_b32 s8, s8, 22")
        a("s_and_b32 s9, s2, 3"); a("s_lshl_b32 s9, s9, 18"); a("s_add_u32 s8, s8, s9")
        a("s_lshl_b32 s9, s3, 12"); a("s_add_u32 s8, s8, s9")
        a(f"s_add_u32 s8, s8, {12288*256}")
        a("s_waitcnt lgkmcnt(0)")
        a("s_add_u32 s4, s4, s8"); a("s_addc_u32 s5, s5, 0")
        a("s_add_u32 s6, s6, s8"); a("s_addc_u32 s7, s7, 0")

        def issue(k):
            isk = k < 32
            i = k & 31
            c = i & 3
            lo = 4 if isk else 6
            off = c * (256 if isk else 1024)
            a(f"global_load_dwordx4 {v(RING+4*i,4)}, {v(VK if isk else VV)}, {s(lo,2)} offset:{off}{nt}")
            if c == 3 and (i != 31):
                a(f"s_add_u32 {s(lo)}, {s(lo)}, 32768"); a(f"s_addc_u32 {s(lo+1)}, {s(lo+1)}, 0")

        def qk(r):
            d = DQ + 4 * (r & 1)
            for u in range(4):
                c = "0" if u == 0 else v(d, 4)
                a(f"v_mfma_f32_16x16x32_bf16 {v(d,4)}, {v(A+4*u,4)}, {v(RING+16*r+4*u,4)}, {c}")
            t = S + r
            a(f"v_mov_b32_dpp {v(t)}, {v(d)} quad_perm:[0,0,0,0] row_mask:0xf bank_mask:0xf")
            for k in range(1, 4):
                a(f"v_add_f32_dpp {v(t)}, {v(d+k)}, {v(t)} quad_perm:[{k},{k},{k},{k}] row_mask:0xf bank_mask:0xf")
            self.round1(t)
            a(f"v_mul_f32 {v(t)}, 0x{SCALE:x}, {v(t)}")
            self.round1(t)

        def pv(i):
            r, c = i >> 2, i & 3
            b = BT + 4 * (i & 1)
            for k in range(4):
                a(f"v_and_b32_dpp {v(b+k)}, {v(S+r)}, {v(MASK+k)} row_newbcast:{4*c} row_mask:0xf bank_mask:0xf")
            cc = "0" if i == 0 else v(DP, 4)
            a(f"v_mfma_f32_16x16x32_bf16 {v(DP,4)}, {v(RING+4*i,4)}, {v(b,4)}, {cc}")

        def qcheck():
            self.ts(1)
            a(f"v_mov_b32 {v(T0)}, 0")
            self.spin_lds(C_QV, 1, 0x10, T0, T0 + 1)
            self.ts(2)
            a(f"v_lshrrev_b32 {v(T0)}, 4, {v(LANE)}")
            a(f"v_lshlrev_b32 {v(T0)}, 2, {v(T0)}")
            a(f"v_and_b32 {v(T0+1)}, 3, {v(LANE)}")
            a(f"v_add_u32 {v(T0)}, {v(T0)}, {v(T0+1)}")
            a(f"v_lshlrev_b32 {v(T0)}, 4, {v(T0)}")
            a(f"v_add_u32 {v(T0)}, {L_Q}, {v(T0)}")
            a(f"v_bfe_u32 {v(T0+1)}, {v(LANE)}, 2, 2")
            a(f"v_mov_b32 {v(T0+2)}, {L_ZERO}")
            for u in range(4):
                a(f"v_cmp_eq_u32 vcc, {u}, {v(T0+1)}")
                a(f"v_cndmask_b32 {v(T0+3)}, {v(T0+2)}, {v(T0)}, vcc")
                a(f"ds_read_b128 {v(A+4*u,4)}, {v(T0+3)}")
            a("s_waitcnt lgkmcnt(0)")

        M, LS = 4, 5
        def local_softmax():
            a(f"v_max3_f32 {v(M)}, {v(S)}, {v(S+1)}, {v(S+2)}")
            a(f"v_max3_f32 {v(M)}, {v(M)}, {v(S+3)}, {v(S+4)}")
            a(f"v_max3_f32 {v(M)}, {v(M)}, {v(S+5)}, {v(S+6)}")
            a(f"v_max_f32 {v(M)}, {v(M)}, {v(S+7)}")
            def red(r, op):
                a(f"{op}_dpp {v(r)}, {v(r)}, {v(r)} row_ror:4 row_mask:0xf bank_mask:0xf")
                a(f"{op}_dpp {v(r)}, {v(r)}, {v(r)} row_ror:8 row_mask:0xf bank_mask:0xf")
                a(f"v_mov_b32 {v(T0)}, {v(r)}")
                a(f"v_permlane16_swap_b32 {v(r)}, {v(T0)}")
                a(f"{op} {v(r)}, {v(r)}, {v(T0)}")
                a(f"v_mov_b32 {v(T0)}, {v(r)}")
                a(f"v_permlane32_swap_b32 {v(r)}, {v(T0)}")
                a(f"{op} {v(r)}, {v(r)}, {v(T0)}")
            red(M, "v_max_f32")
            for r in range(8):
                a(f"v_sub_f32 {v(S+r)}, {v(S+r)}, {v(M)}")
            for r in range(8):
                a(f"v_mul_f32 {v(S+r)}, 0x{LOG2E:x}, {v(S+r)}")
            for r in range(8):
                a(f"v_exp_f32 {v(S+r)}, {v(S+r)}")
            a(f"v_add_f32 {v(LS)}, {v(S)}, {v(S+1)}")
            for r in range(2, 8):
                a(f"v_add_f32 {v(LS)}, {v(LS)}, {v(S+r)}")
            red(LS, "v_add_f32")
            a("s_lshl_b32 s8, s3, 3")
            a(f"v_mov_b32 {v(T0)}, s8")
            a(f"ds_write_b64 {v(T0)}, {v(M,2)} offset:{L_MLW}")
            a(f"v_and_b32 {v(6)}, 7, {v(LANE)}")
            a(f"v_and_b32 {v(7)}, 1, {v(6)}")
            a(f"v_cmp_eq_u32 vcc, 1, {v(7)}")
            a(f"v_mov_b32 {v(7)}, 0xffff")
            a(f"v_mov_b32 {v(T0)}, 0x{HI:x}")
            a(f"v_cndmask_b32 {v(7)}, {v(7)}, {v(T0)}, vcc")
            a(f"v_lshrrev_b32 {v(6)}, 1, {v(6)}")
            for k in range(4):
                a(f"v_cmp_eq_u32 vcc, {k}, {v(6)}")
                a(f"v_cndmask_b32 {v(MASK+k)}, 0, {v(7)}, vcc")

        def pcheck():
            self.ts(4)
            L = a.uid("Lp")
            a(f"v_mov_b32 {v(T0)}, 0")
            a("s_mov_b32 s19, 0x11"); a("s_mov_b32 s18, 0")
            a.label(L)
            a(f"ds_read_b64 {v(6,2)}, {v(T0)} offset:{L_MG}")
            a("s_add_u32 s18, s18, 1")
            a(f"s_cmp_gt_u32 s18, {o['bound_l']}")
            a("s_cbranch_scc1 L_fail")
            a("s_waitcnt lgkmcnt(0)")
            a(f"v_cmp_eq_u32 vcc, -1, {v(7)}")
            a(f"s_cbranch_vccnz {L}")
            self.ts(5)
            a(f"v_sub_f32 {v(6)}, {v(M)}, {v(6)}")
            a(f"v_mul_f32 {v(6)}, 0x{LOG2E:x}, {v(6)}")
            a(f"v_exp_f32 {v(6)}, {v(6)}")
            a(f"v_mul_f32 {v(6)}, {v(6)}, {v(7)}")
            for r in range(8):
                a(f"v_mul_f32 {v(S+r)}, {v(S+r)}, {v(6)}")
            for r in range(8):
                a(f"v_cvt_pk_bf16_f32 {v(S+r)}, {v(S+r)}, {v(S+r)}")

        q0, p0 = o["q0"], o["p0"]
        assert D <= q0 <= 31 and 36 + (D - 4) <= p0 <= 63
        for k in range(D):
            issue(k)
        qk_done = 0
        pv_done = 0
        soft_done = False
        for k in range(D, 64):
            a(f"s_waitcnt vmcnt({D-1})")
            arrived = k - D
            if k >= 32:
                assert qk_done > ((k - 32) >> 2), f"V load {k-32} would overwrite unread K"
            issue(k)
            if k == q0:
                qcheck()
            if k >= q0 and qk_done < 8:
                n = 0
                while qk_done < 8 and 4 * qk_done + 3 <= arrived and n < 1:
                    qk(qk_done); qk_done += 1; n += 1
                if qk_done == 8 and not soft_done:
                    local_softmax(); soft_done = True
                    self.ts(3)
            if k == p0:
                assert soft_done
                pcheck()
            if k >= p0:
                n = 0
                while pv_done < 32 and 32 + pv_done <= arrived and n < 3:
                    pv(pv_done); pv_done += 1; n += 1
        for j in range(D):
            a(f"s_waitcnt vmcnt({D-1-j})")
            arrived = 64 - D + j
            if j == 0:
                while 32 + pv_done < arrived:
                    pv(pv_done); pv_done += 1
            while pv_done < 32 and 32 + pv_done <= arrived:
                pv(pv_done); pv_done += 1
        assert pv_done == 32
        self.ts(6)
        a(f"v_lshrrev_b32 {v(T0)}, 4, {v(LANE)}")
        a(f"v_lshlrev_b32 {v(T0)}, 7, {v(T0)}")
        a(f"v_and_b32 {v(T0+1)}, 7, {v(LANE)}")
        a(f"v_lshl_add_u32 {v(T0)}, {v(T0+1)}, 2, {v(T0)}")
        a("s_lshl_b32 s8, s3, 9")
        a(f"v_add_u32 {v(T0)}, s8, {v(T0)}")
        for r in range(4):
            a(f"ds_write_b32 {v(T0)}, {v(DP+r)} offset:{L_RED + 32*r}")
        a("s_waitcnt lgkmcnt(0)")
        a("s_barrier")
        self.ts(7)
        self.stream_tail()

    def stream_tail(self):
        a, o = self.a, self.o
        LANE, T0 = 0, 3
        TR256, TR128, BF, ST = 8, 9, 10, 11
        WA, GA, DA, XB, DD = 16, 32, 48, 56, 72
        a("s_cmp_ge_u32 s2, 160")
        a("s_cbranch_scc1 L_stream_end")
        a("s_load_dwordx2 s[4:5], s[0:1], 104")
        self.tr_addr(TR256, LANE, 256, T0)
        self.tr_addr(TR128, LANE, 128, T0)
        a("s_lshl_b32 s8, s3, 5")
        a(f"v_add_u32 {v(TR256)}, s8, {v(TR256)}")
        a("s_and_b32 s9, s3, 3"); a("s_lshl_b32 s9, s9, 5")
        a("s_lshr_b32 s10, s3, 2"); a("s_lshl_b32 s10, s10, 14"); a("s_add_u32 s9, s9, s10")
        a(f"v_add_u32 {v(TR128)}, s9, {v(TR128)}")
        a(f"v_add_u32 {v(BF)}, {L_C}, {v(TR256)}")
        self.tr_frags(WA, BF, 0, 256, 4)
        a("s_cmp_ge_u32 s2, 135")
        a("s_cbranch_scc1 L_st_noffn")
        self.tr_frags(GA, TR128, L_GATE, 128, 4)
        self.tr_frags(DA, TR256, L_DOWN, 256, 2)
        a.label("L_st_noffn")
        a(f"v_and_b32 {v(T0)}, 1, {v(LANE)}")
        a(f"v_lshlrev_b32 {v(ST)}, 6, {v(T0)}")
        a(f"v_lshrrev_b32 {v(T0)}, 4, {v(LANE)}")
        a(f"v_lshl_add_u32 {v(ST)}, {v(T0)}, 4, {v(ST)}")
        a(f"s_mul_i32 s8, s2, {STRIDE}"); a(f"s_add_u32 s8, s8, {OBBASE}")
        a("s_lshl_b32 s9, s3, 7"); a("s_add_u32 s8, s8, s9")
        a(f"v_add_u32 {v(ST)}, s8, {v(ST)}")
        a("s_mov_b32 s14, 0x00030003"); a("s_mov_b32 s15, 0x00030003")

        def stage(xlds, rowbytes, afr, nks, ob):
            self.bfrag_addr(BF, LANE, rowbytes, T0)
            a("s_waitcnt lgkmcnt(0)")
            a("s_barrier")
            for ks in range(nks):
                a(f"ds_read_b128 {v(XB+4*ks,4)}, {v(BF)} offset:{xlds + 64*ks}")
            for ks in range(nks):
                a(f"s_waitcnt lgkmcnt({nks-1-ks})")
                c = "0" if ks == 0 else v(DD, 4)
                a(f"v_mfma_f32_16x16x32_bf16 {v(DD,4)}, {v(afr+4*ks,4)}, {v(XB+4*ks,4)}, {c}")
            a("s_mov_b64 exec, s[14:15]")
            if ob < 4096:
                a(f"global_store_dwordx4 {v(ST)}, {v(DD,4)}, s[4:5] offset:{ob} sc1")
            else:
                a(f"v_add_u32 {v(T0)}, 4096, {v(ST)}")
                a(f"global_store_dwordx4 {v(T0)}, {v(DD,4)}, s[4:5] offset:{ob-4096} sc1")
            a("s_mov_b64 exec, -1")

        stage(L_XO, 256, WA, 4, OB_WO)
        self.ts(8)
        a("s_cmp_ge_u32 s2, 135")
        a("s_cbranch_scc1 L_stream_end")
        stage(L_XH2, 256, GA, 4, OB_GU)
        self.ts(9)
        stage(L_XA, 128, DA, 2, OB_Y)
        self.ts(10)
        a.label("L_stream_end")
        self.epilogue_ts(11)
        a("s_endpgm")

    def helper(self):
        a, o = self.a, self.o
        LANE, VZ, T0 = 0, 1, 2
        HW = 22
        a.label("L_helper")
        if o["prio"]:
            a(f"s_setprio {o['prio']}")
        a(f"s_sub_u32 s{HW}, s3, 8")
        a("s_load_dwordx2 s[4:5], s[0:1], 104")
        a(f"v_mov_b32 {v(VZ)}, 0")
        a(f"v_mov_b32 {v(39)}, 0")
        a(f"s_cmp_lg_u32 s{HW}, 0")
        a("s_cbranch_scc1 L_h_noinit")
        a(f"v_lshlrev_b32 {v(T0)}, 2, {v(LANE)}")
        a(f"v_subrev_u32 {v(T0+1)}, 16, {v(LANE)}")
        a(f"v_cmp_gt_u32 vcc, 18, {v(T0+1)}")
        a(f"v_cndmask_b32 {v(T0+1)}, 0, -1, vcc")
        a(f"ds_write_b32 {v(T0)}, {v(T0+1)}")
        a(f"ds_write_b32 {v(T0)}, {v(VZ)} offset:{L_ZERO}")
        a("s_waitcnt lgkmcnt(0)")
        a.label("L_h_noinit")
        a("s_barrier")
        self.ts(0)
        a("s_sub_u32 s8, 255, s2")
        a("s_and_b32 s23, s8, 3"); a("s_lshr_b32 s24, s8, 2")
        a("s_sub_u32 s8, s2, 96")
        a("s_and_b32 s25, s8, 31"); a("s_lshr_b32 s26, s8, 5")
        a(f"s_cmp_eq_u32 s{HW}, 3")
        a("s_cbranch_scc1 L_h3")
        self.helper012_early()
        a("s_branch L_h_wq_compute")
        a.label("L_h3")
        self.helper3_early()
        a.label("L_h_wq_compute")
        self.wq_compute()
        a.label("L_h_after_wq")
        a(f"s_cmp_eq_u32 s{HW}, 0")
        a("s_cbranch_scc1 L_h0_main")
        self.bulk()
        a.label("L_h0_main")
        self.h0_main()

    def mod_compute(self, tag):
        a = self.a
        LANE, VZ, T0, HW = 0, 1, 2, 22
        TR, BF, ST = 8, 9, 10
        AF, XB, DD = 84, 124, 144
        self.spin_lds(C_MODT, 4, 0x20, VZ, T0)
        self.tr_addr(TR, LANE, 256, T0)
        a(f"s_lshl_b32 s8, s{HW}, 6")
        a(f"v_add_u32 {v(TR)}, s8, {v(TR)}")
        self.bfrag_addr(BF, LANE, 320, T0)
        for ks in range(5):
            a(f"ds_read_b128 {v(XB+4*ks,4)}, {v(BF)} offset:{L_SC + 64*ks}")
        self.tr_frags(AF, TR, L_A, 256, 5)
        self.tr_frags(AF + 20, TR, L_A, 256, 5, extra=32)
        a(f"v_and_b32 {v(T0)}, 1, {v(LANE)}")
        a(f"v_lshlrev_b32 {v(ST)}, 6, {v(T0)}")
        a(f"v_lshrrev_b32 {v(T0)}, 4, {v(LANE)}")
        a(f"v_lshl_add_u32 {v(ST)}, {v(T0)}, 4, {v(ST)}")
        a(f"s_mul_i32 s8, s2, {STRIDE}"); a(f"s_add_u32 s8, s8, {OBBASE + OB_MOD}")
        a(f"s_lshl_b32 s9, s{HW}, 8"); a("s_add_u32 s8, s8, s9")
        a(f"v_add_u32 {v(ST)}, s8, {v(ST)}")
        a("s_waitcnt lgkmcnt(0)")
        for ks in range(5):
            for cb in range(2):
                d = DD + 4 * cb
                c = "0" if ks == 0 else v(d, 4)
                a(f"v_mfma_f32_16x16x32_bf16 {v(d,4)}, {v(AF+20*cb+4*ks,4)}, {v(XB+4*ks,4)}, {c}")
        a("s_mov_b32 exec_lo, 0x00030003"); a("s_mov_b32 exec_hi, 0x00030003")
        a(f"global_store_dwordx4 {v(ST)}, {v(DD,4)}, s[4:5] sc1")
        a(f"global_store_dwordx4 {v(ST)}, {v(DD+4,4)}, s[4:5] offset:128 sc1")
        a("s_mov_b64 exec, -1")

    def helper012_early(self):
        a, o = self.a, self.o
        LANE, VZ, T0, HW = 0, 1, 2, 22
        VO = 6
        a("s_cmp_lt_u32 s2, 96")
        a("s_cbranch_scc1 L_h_after_wq")
        a("s_load_dwordx2 s[6:7], s[0:1], 80")
        a("s_load_dwordx2 s[28:29], s[0:1], 24")
        a(f"v_lshrrev_b32 {v(T0)}, 4, {v(LANE)}")
        a(f"v_and_b32 {v(T0+1)}, 15, {v(LANE)}")
        a(f"v_lshlrev_b32 {v(T0+1)}, 4, {v(T0+1)}")
        a(f"v_mul_u32_u24 {v(VO)}, 7680, {v(T0)}")
        a(f"v_add_u32 {v(VO)}, {v(VO)}, {v(T0+1)}")
        a(f"v_lshlrev_b32 {v(VO+1)}, 13, {v(T0)}")
        a(f"v_add_u32 {v(VO+1)}, {v(VO+1)}, {v(T0+1)}")
        a("s_waitcnt lgkmcnt(0)")
        a("s_cmp_lt_u32 s2, 136")
        a("s_cbranch_scc1 L_h012_nomod")
        a(f"s_mul_i32 s8, s23, {160*7680}"); a("s_lshl_b32 s9, s24, 8"); a("s_add_u32 s8, s8, s9")
        a("s_add_u32 s6, s6, s8"); a("s_addc_u32 s7, s7, 0")
        self.dma_loop(6, VO, 4 * 7680, 40, L_A, HW, 3)
        a.label("L_h012_nomod")
        a(f"s_mul_i32 s8, s26, {128*8192}"); a("s_lshl_b32 s9, s25, 8"); a("s_add_u32 s8, s8, s9")
        a("s_add_u32 s28, s28, s8"); a("s_addc_u32 s29, s29, 0")
        self.dma_loop(28, VO + 1, 4 * 8192, 32, L_B, HW, 3)
        self.ts(1)
        a("s_cmp_lt_u32 s2, 136")
        a("s_cbranch_scc1 L_h012_nomod2")
        a("s_waitcnt vmcnt(10)")
        self.ts(2)
        self.lds_arrive(C_MODT, VZ, T0)
        self.mod_compute("a")
        self.ts(3)
        a.label("L_h012_nomod2")
        a("s_waitcnt vmcnt(0)")
        self.lds_arrive(C_WQT, VZ, T0)

    def helper3_early(self):
        a, o = self.a, self.o
        LANE, VZ, T0, HW = 0, 1, 2, 22
        X, MU, RS, Y = 24, 34, 35, 36
        CC = 44
        G = 48
        a("s_load_dwordx2 s[6:7], s[0:1], 0")
        a("s_load_dwordx2 s[28:29], s[0:1], 72")
        a("s_waitcnt lgkmcnt(0)")
        a(f"global_load_dwordx2 {v(40,2)}, {v(VZ)}, s[4:5] sc1")
        a(f"v_mov_b32 {v(8)}, -1"); a(f"v_mov_b32 {v(9)}, -1"); a(f"v_mov_b32 {v(10)}, -1"); a(f"v_mov_b32 {v(11)}, -1")
        a(f"s_mul_i32 s8, s2, {STRIDE}"); a(f"s_add_u32 s8, s8, {OBBASE}")
        a(f"v_lshlrev_b32 {v(T0)}, 4, {v(LANE)}")
        a(f"v_add_u32 {v(T0)}, s8, {v(T0)}")
        a(f"v_add_u32 {v(T0+1)}, 4096, {v(T0)}")
        for i in range(4):
            a(f"global_store_dwordx4 {v(T0)}, {v(8,4)}, s[4:5] offset:{1024*i} sc1")
        for i in range(2):
            a(f"global_store_dwordx4 {v(T0+1)}, {v(8,4)}, s[4:5] offset:{1024*i} sc1")
        a("s_cmp_lt_u32 s2, 96")
        a("s_cbranch_scc1 L_h3_nox")
        a(f"v_lshrrev_b32 {v(T0)}, 5, {v(LANE)}")
        a(f"v_mul_u32_u24 {v(T0)}, 1280, {v(T0)}")
        a(f"v_and_b32 {v(T0+1)}, 31, {v(LANE)}")
        a(f"v_lshl_add_u32 {v(T0)}, {v(T0+1)}, 3, {v(T0)}")
        a("s_mov_b32 s9, s26")
        for i in range(5):
            a("s_lshl_b32 s8, s9, 8")
            a(f"v_add_u32 {v(T0+1)}, s8, {v(T0)}")
            a(f"global_load_dwordx2 {v(X+2*i,2)}, {v(T0+1)}, s[6:7]")
            if i < 4:
                a("s_add_u32 s9, s9, 1"); a("s_cmp_eq_u32 s9, 5"); a("s_cselect_b32 s9, 0, s9")
        a.label("L_h3_nox")
        a("s_cmp_lt_u32 s2, 136")
        a("s_cbranch_scc1 L_h3_noc")
        a(f"v_lshrrev_b32 {v(T0)}, 5, {v(LANE)}")
        a(f"v_mul_u32_u24 {v(T0)}, 1280, {v(T0)}")
        a(f"v_and_b32 {v(T0+1)}, 31, {v(LANE)}")
        a(f"v_min_u32 {v(T0+1)}, 19, {v(T0+1)}")
        a(f"v_lshl_add_u32 {v(T0)}, {v(T0+1)}, 4, {v(T0)}")
        a("s_mul_i32 s8, s23, 320")
        a(f"v_add_u32 {v(T0)}, s8, {v(T0)}")
        a(f"global_load_dwordx4 {v(CC,4)}, {v(T0)}, s[28:29]")
        a.label("L_h3_noc")
        a("s_waitcnt vmcnt(0) lgkmcnt(0)")
        self.ts(1)
        a(f"v_readfirstlane_b32 s20, {v(40)}"); a(f"v_readfirstlane_b32 s21, {v(41)}")
        a("s_add_u32 s20, s20, 1")
        a(f"v_mov_b32 {v(8)}, s20"); a(f"v_mov_b32 {v(9)}, s21")
        a("s_lshl_b32 s8, s2, 3"); a(f"s_add_u32 s8, s8, {FLAGS}")
        a(f"v_mov_b32 {v(T0)}, s8")
        a("s_mov_b64 exec, 1")
        a(f"global_store_dwordx2 {v(T0)}, {v(8,2)}, s[4:5] sc1")
        a("s_mov_b64 exec, -1")
        a("s_cmp_lt_u32 s2, 136")
        a("s_cbranch_scc1 L_h3_nomod")
        for i in range(4):
            self.unpack(12 + 2 * i, 13 + 2 * i, CC + i)
        for i in range(8):
            a(f"v_mul_f32 {v(48+i)}, 0x{LOG2E ^ 0x80000000:x}, {v(12+i)}")
        for i in range(8):
            a(f"v_exp_f32 {v(48+i)}, {v(48+i)}")
        for i in range(8):
            a(f"v_add_f32 {v(48+i)}, 1.0, {v(48+i)}")
        for i in range(8):
            a(f"v_rcp_f32 {v(48+i)}, {v(48+i)}")
        for i in range(8):
            a(f"v_mul_f32 {v(12+i)}, {v(12+i)}, {v(48+i)}")
        for i in range(4):
            a(f"v_cvt_pk_bf16_f32 {v(CC+i)}, {v(12+2*i)}, {v(13+2*i)}")
        a(f"v_lshrrev_b32 {v(T0)}, 5, {v(LANE)}")
        a(f"v_mul_u32_u24 {v(T0)}, 320, {v(T0)}")
        a(f"v_and_b32 {v(T0+1)}, 31, {v(LANE)}")
        a(f"v_min_u32 {v(T0+1)}, 19, {v(T0+1)}")
        a(f"v_lshl_add_u32 {v(T0)}, {v(T0+1)}, 4, {v(T0)}")
        a(f"ds_write_b128 {v(T0)}, {v(CC,4)} offset:{L_SC}")
        a("s_waitcnt lgkmcnt(0)")
        self.lds_arrive(C_MODT, VZ, T0)
        a.label("L_h3_nomod")
        a("s_cmp_lt_u32 s2, 96")
        a("s_cbranch_scc1 L_h3_noln")
        self.ln_stats(X, MU, RS, T0)
        self.ln_apply(X, MU, RS, Y, T0)
        a.label("L_h3_noln")
        a("s_cmp_lt_u32 s2, 136")
        a("s_cbranch_scc1 L_h3_nomod2")
        self.mod_compute("b")
        a.label("L_h3_nomod2")
        self.ts(2)
        L = a.uid("Lfl")
        a(f"v_lshlrev_b32 {v(T0+3)}, 4, {v(LANE)}")
        a(f"v_add_u32 {v(T0+3)}, {FLAGS}, {v(T0+3)}")
        a("s_mov_b32 s19, 0x30"); a("s_mov_b32 s18, 0")
        Lf = a.uid("Lflf")
        a(f"s_branch {Lf}")
        a.label(L)
        a("s_sleep 2")
        a.label(Lf)
        a(f"global_load_dwordx4 {v(8,4)}, {v(T0+3)}, s[4:5] sc1")
        a(f"global_load_dwordx4 {v(12,4)}, {v(T0+3)}, s[4:5] offset:1024 sc1")
        a("s_add_u32 s18, s18, 1")
        a(f"s_cmp_gt_u32 s18, {o['bound_g']}")
        a("s_cbranch_scc1 L_fail")
        a("s_waitcnt vmcnt(0)")
        for i in range(8):
            a(f"v_xor_b32 {v(8+i)}, s{20 + (i & 1)}, {v(8+i)}")
        a(f"v_or3_b32 {v(8)}, {v(8)}, {v(9)}, {v(10)}")
        a(f"v_or3_b32 {v(8)}, {v(8)}, {v(11)}, {v(12)}")
        a(f"v_or3_b32 {v(8)}, {v(8)}, {v(13)}, {v(14)}")
        a(f"v_or_b32 {v(8)}, {v(8)}, {v(15)}")
        a(f"v_cmp_ne_u32 vcc, 0, {v(8)}")
        a(f"s_cbranch_vccnz {L}")
        a(f"v_mov_b32 {v(T0)}, s20")
        a(f"ds_write_b32 {v(VZ)}, {v(T0)} offset:{C_EP}")
        self.lds_arrive(C_FL, VZ, T0)
        self.ts(3)
        a("s_cmp_lt_u32 s2, 96")
        a("s_cbranch_scc1 L_h_after_wq")
        self.mod_gather_addr(16, LANE, T0)
        a("s_lshl_b32 s8, s26, 2"); a("s_sub_u32 s8, 255, s8")
        offs = []
        for which in range(2):
            for ks in range(4):
                r = 16 + 1 + 4 * which + ks
                a(f"s_sub_u32 s9, s8, {20*which + ks}")
                a(f"s_mul_i32 s9, s9, {STRIDE}")
                a(f"v_add_u32 {v(r)}, s9, {v(16)}")
                offs.append(r)
        self.gather([(G + 4 * i, offs[i], 0, None) for i in range(8)], 4, 0x31, T0, sleep=1)
        self.ts(4)
        self.sum4x4(G, 4)
        self.sum4x4(G + 16, 4)
        self.round4(G, T0)
        self.round4(G + 16, T0)
        for i in range(4):
            a(f"v_add_f32 {v(G+16+i)}, 1.0, {v(G+16+i)}")
        self.round4(G + 16, T0)
        self.modulate(Y, G + 16, G, T0)
        a(f"v_lshrrev_b32 {v(T0+2)}, 5, {v(LANE)}")
        a(f"v_lshlrev_b32 {v(T0+2)}, 8, {v(T0+2)}")
        a(f"v_and_b32 {v(T0+3)}, 31, {v(LANE)}")
        a(f"v_lshl_add_u32 {v(T0+2)}, {v(T0+3)}, 3, {v(T0+2)}")
        a(f"ds_write_b64 {v(T0+2)}, {v(T0,2)} offset:{L_XH}")
        a("s_waitcnt lgkmcnt(0)")
        self.lds_arrive(C_H, VZ, T0)
        self.ts(5)

    def mod_gather_addr(self, d, lane, t):
        a = self.a
        a(f"v_bfe_u32 {v(t)}, {v(lane)}, 2, 3")
        a(f"v_lshlrev_b32 {v(d)}, 7, {v(t)}")
        a(f"v_lshrrev_b32 {v(t)}, 5, {v(lane)}")
        a(f"v_lshl_add_u32 {v(d)}, {v(t)}, 6, {v(d)}")
        a(f"v_and_b32 {v(t)}, 3, {v(lane)}")
        a(f"v_lshl_add_u32 {v(d)}, {v(t)}, 4, {v(d)}")
        a(f"v_add_u32 {v(d)}, {OBBASE + OB_MOD}, {v(d)}")

    def wq_compute(self):
        a = self.a
        LANE, VZ, T0, HW = 0, 1, 2, 22
        TR, BF, ST = 8, 9, 10
        AF, XB, DD = 80, 112, 128
        self.spin_lds(C_WQT, 3, 0x40, VZ, T0)
        self.tr_addr(TR, LANE, 256, T0)
        a(f"s_lshl_b32 s8, s{HW}, 6"); a(f"s_add_u32 s8, s8, {L_B}")
        a(f"v_add_u32 {v(TR)}, s8, {v(TR)}")
        self.tr_frags(AF, TR, 0, 256, 4)
        self.tr_frags(AF + 16, TR, 0, 256, 4, extra=32)
        self.bfrag_addr(BF, LANE, 256, T0)
        a(f"v_and_b32 {v(T0)}, 1, {v(LANE)}")
        a(f"v_lshlrev_b32 {v(ST)}, 9, {v(T0)}")
        a(f"v_lshrrev_b32 {v(T0)}, 4, {v(LANE)}")
        a(f"v_lshl_add_u32 {v(ST)}, {v(T0)}, 4, {v(ST)}")
        a(f"s_mul_i32 s8, s2, {STRIDE}"); a(f"s_add_u32 s8, s8, {OBBASE + OB_QP}")
        a(f"s_lshl_b32 s9, s{HW}, 7"); a("s_add_u32 s8, s8, s9")
        a(f"v_add_u32 {v(ST)}, s8, {v(ST)}")
        self.spin_lds(C_H, 1, 0x41, VZ, T0)
        for ks in range(4):
            a(f"ds_read_b128 {v(XB+4*ks,4)}, {v(BF)} offset:{L_XH + 64*ks}")
        a("s_waitcnt lgkmcnt(0)")
        for ks in range(4):
            for cb in range(2):
                d = DD + 4 * cb
                c = "0" if ks == 0 else v(d, 4)
                a(f"v_mfma_f32_16x16x32_bf16 {v(d,4)}, {v(AF+16*cb+4*ks,4)}, {v(XB+4*ks,4)}, {c}")
        a("s_mov_b32 exec_lo, 0x00030003"); a("s_mov_b32 exec_hi, 0x00030003")
        a(f"global_store_dwordx4 {v(ST)}, {v(DD,4)}, s[4:5] sc1")
        a(f"global_store_dwordx4 {v(ST)}, {v(DD+4,4)}, s[4:5] offset:64 sc1")
        a("s_mov_b64 exec, -1")
        self.ts(6)

    def bulk(self):
        a, o = self.a, self.o
        LANE, VZ, T0, HW = 0, 1, 2, 22
        VO = 6
        a("s_setprio 0")
        a(f"s_sub_u32 s27, s{HW}, 1")
        a("s_cmp_ge_u32 s2, 160")
        a("s_cbranch_scc1 L_bulk_done")
        a("s_load_dwordx2 s[6:7], s[0:1], 32")
        a("s_load_dwordx4 s[28:31], s[0:1], 48")
        a("s_load_dwordx2 s[32:33], s[0:1], 64")
        a(f"v_lshrrev_b32 {v(T0)}, 4, {v(LANE)}")
        a(f"v_and_b32 {v(T0+1)}, 15, {v(LANE)}")
        a(f"v_lshlrev_b32 {v(T0+1)}, 4, {v(T0+1)}")
        a(f"v_mul_u32_u24 {v(VO)}, 1280, {v(T0)}")
        a(f"v_add_u32 {v(VO)}, {v(VO)}, {v(T0+1)}")
        a(f"v_lshrrev_b32 {v(T0)}, 3, {v(LANE)}")
        a(f"v_and_b32 {v(T0+1)}, 7, {v(LANE)}")
        a(f"v_lshlrev_b32 {v(T0+1)}, 4, {v(T0+1)}")
        a(f"v_mul_u32_u24 {v(VO+1)}, 3456, {v(T0)}")
        a(f"v_add_u32 {v(VO+1)}, {v(VO+1)}, {v(T0+1)}")
        a("s_and_b32 s8, s2, 31"); a(f"s_mul_i32 s8, s8, {128*1280}")
        a("s_lshr_b32 s9, s2, 5"); a("s_lshl_b32 s9, s9, 8"); a("s_add_u32 s8, s8, s9")
        a("s_waitcnt lgkmcnt(0)")
        a("s_add_u32 s6, s6, s8"); a("s_addc_u32 s7, s7, 0")
        self.dma_paced(6, VO, 4 * 1280, 32, L_C, 27, 3)
        a("s_cmp_ge_u32 s2, 135")
        a("s_cbranch_scc1 L_bulk_done")
        a("s_mul_i32 s34, s2, 19"); a("s_lshr_b32 s34, s34, 9")
        a("s_mul_i32 s8, s34, 27"); a("s_sub_u32 s35, s2, s8")
        a(f"s_mul_i32 s8, s34, {128*3456}"); a("s_lshl_b32 s9, s35, 7"); a("s_add_u32 s8, s8, s9")
        a("s_add_u32 s28, s28, s8"); a("s_addc_u32 s29, s29, 0")
        a("s_add_u32 s30, s30, s8"); a("s_addc_u32 s31, s31, 0")
        a(f"s_mul_i32 s8, s35, {64*1280}"); a("s_lshl_b32 s9, s34, 8"); a("s_add_u32 s8, s8, s9")
        a("s_add_u32 s32, s32, s8"); a("s_addc_u32 s33, s33, 0")
        self.dma_paced(28, VO + 1, 8 * 3456, 16, L_GATE, 27, 3)
        self.dma_paced(30, VO + 1, 8 * 3456, 16, L_UP, 27, 3)
        self.dma_paced(32, VO, 4 * 1280, 16, L_DOWN, 27, 3)
        a.label("L_bulk_done")
        a("s_waitcnt vmcnt(0)")
        self.ts(7)
        a("s_barrier")
        a(f"s_cmp_lg_u32 s{HW}, 1")
        a("s_cbranch_scc1 L_bulk_end")
        a("s_setprio 3")
        R = 8
        a(f"v_lshrrev_b32 {v(T0)}, 5, {v(LANE)}")
        a(f"v_lshlrev_b32 {v(T0)}, 11, {v(T0)}")
        a(f"v_and_b32 {v(T0+1)}, 31, {v(LANE)}")
        a(f"v_lshl_add_u32 {v(T0)}, {v(T0+1)}, 4, {v(T0)}")
        for k in range(4):
            a(f"ds_read_b128 {v(R+4*k,4)}, {v(T0)} offset:{L_RED + 512*k}")
        a(f"s_mul_i32 s8, s2, {STRIDE}"); a(f"s_add_u32 s8, s8, {OBBASE + OB_OP}")
        a(f"v_lshlrev_b32 {v(T0+1)}, 4, {v(T0+1)}")
        a(f"v_add_u32 {v(T0+1)}, s8, {v(T0+1)}")
        a("s_waitcnt lgkmcnt(0)")
        self.sum4x4(R, 4)
        for i in range(4):
            a(f"v_mov_b32 {v(R+4+i)}, {v(R+i)}")
        for i in range(4):
            a(f"v_permlane32_swap_b32 {v(R+i)}, {v(R+4+i)}")
        for i in range(4):
            a(f"v_add_f32 {v(R+i)}, {v(R+i)}, {v(R+4+i)}")
        a("s_mov_b32 exec_hi, 0")
        a(f"global_store_dwordx4 {v(T0+1)}, {v(R,4)}, s[4:5] sc1")
        self.ts(8)
        a.label("L_bulk_end")
        self.epilogue_ts(9)
        a("s_endpgm")

    def h0_main(self):
        a, o = self.a, self.o
        LANE, VZ, T0 = 0, 1, 2
        G = 48
        self.spin_lds(C_FL, 1, 0x50, VZ, T0)
        a("s_lshr_b32 s8, s2, 2"); a("s_and_b32 s9, s8, 31"); a("s_lshr_b32 s8, s8, 5")
        a("s_add_u32 s9, s9, 96"); a(f"s_mul_i32 s9, s9, {STRIDE}")
        a("s_lshl_b32 s8, s8, 9"); a("s_add_u32 s9, s9, s8"); a(f"s_add_u32 s9, s9, {OBBASE + OB_QP}")
        a(f"v_and_b32 {v(T0)}, 31, {v(LANE)}")
        a(f"v_lshlrev_b32 {v(T0)}, 4, {v(T0)}")
        for t in range(5):
            a(f"v_add_u32 {v(16+t)}, s9, {v(T0)}")
            if t < 4:
                a(f"s_add_u32 s9, s9, {32*STRIDE}")
        a("s_mov_b32 exec_hi, 0")
        self.gather([(G + 4 * t, 16 + t, 0, None) for t in range(5)], 4, 0x51, T0 + 1, sleep=o["qsleep"])
        self.sum4x4(G, 5)
        a(f"v_cvt_pk_bf16_f32 {v(8)}, {v(G)}, {v(G+1)}")
        a(f"v_cvt_pk_bf16_f32 {v(9)}, {v(G+2)}, {v(G+3)}")
        a(f"v_lshrrev_b32 {v(T0)}, 1, {v(T0)}")
        a(f"ds_write_b64 {v(T0)}, {v(8,2)} offset:{L_Q}")
        a("s_waitcnt lgkmcnt(0)")
        a("s_mov_b64 exec, -1")
        self.lds_arrive(C_QV, VZ, T0)
        self.ts(7)
        L = a.uid("Lml")
        a(f"v_and_b32 {v(T0)}, 7, {v(LANE)}")
        a(f"v_lshlrev_b32 {v(T0)}, 3, {v(T0)}")
        a("s_mov_b32 s19, 0x52"); a("s_mov_b32 s18, 0")
        a.label(L)
        a(f"ds_read_b64 {v(8,2)}, {v(T0)} offset:{L_MLW}")
        a("s_add_u32 s18, s18, 1")
        a(f"s_cmp_gt_u32 s18, {o['bound_l']*4}")
        a("s_cbranch_scc1 L_fail")
        a("s_waitcnt lgkmcnt(0)")
        a(f"v_max_u32 {v(10)}, {v(8)}, {v(9)}")
        a(f"v_cmp_eq_u32 vcc, -1, {v(10)}")
        a(f"s_cbranch_vccnz {L}")
        self.ts(8)
        def combine(m, l, mods, mo):
            a(f"v_mov_b32 {v(mo)}, {v(m)}")
            for mod in mods:
                a(f"v_max_f32_dpp {v(mo)}, {v(mo)}, {v(mo)} {mod} row_mask:0xf bank_mask:0xf")
            a(f"v_sub_f32 {v(m)}, {v(m)}, {v(mo)}")
            a(f"v_mul_f32 {v(m)}, 0x{LOG2E:x}, {v(m)}")
            a(f"v_exp_f32 {v(m)}, {v(m)}")
            a(f"v_mul_f32 {v(mo+1)}, {v(m)}, {v(l)}")
            for mod in mods:
                a(f"v_add_f32_dpp {v(mo+1)}, {v(mo+1)}, {v(mo+1)} {mod} row_mask:0xf bank_mask:0xf")
        combine(8, 9, ("quad_perm:[1,0,3,2]", "quad_perm:[2,3,0,1]", "row_half_mirror"), 10)
        a(f"s_mul_i32 s8, s2, {STRIDE}"); a(f"s_add_u32 s8, s8, {OBBASE + OB_ML}")
        a(f"v_mov_b32 {v(T0)}, s8")
        a("s_mov_b64 exec, 1")
        a(f"global_store_dwordx2 {v(T0)}, {v(10,2)}, s[4:5] sc1")
        a("s_mov_b64 exec, -1")
        a("s_and_b32 s8, s2, 0xfc")
        a(f"v_and_b32 {v(T0)}, 3, {v(LANE)}")
        a(f"v_add_u32 {v(T0)}, s8, {v(T0)}")
        a(f"v_mul_u32_u24 {v(T0)}, {STRIDE}, {v(T0)}")
        a(f"v_add_u32 {v(16)}, {OBBASE + OB_ML}, {v(T0)}")
        a("s_mov_b64 exec, 15")
        self.gather([(8, 16, 0, None)], 2, 0x53, T0 + 1)
        a("s_mov_b64 exec, -1")
        combine(8, 9, ("quad_perm:[1,0,3,2]", "quad_perm:[2,3,0,1]"), 10)
        a(f"v_rcp_f32 {v(11)}, {v(11)}")
        a("s_mov_b64 exec, 1")
        a(f"ds_write_b64 {v(VZ)}, {v(10,2)} offset:{L_MG}")
        a("s_mov_b64 exec, -1")
        self.ts(9)
        a("s_cmp_lt_u32 s2, 135")
        a("s_cbranch_scc1 L_h0_ffnmod")
        a("s_cmp_lt_u32 s2, 160")
        a("s_cbranch_scc1 L_h0_tail")
        a("s_cmp_ge_u32 s2, 200")
        a("s_cbranch_scc1 L_h0_tail")
        GA, GB, XR = 24, 28, 32
        a("s_sub_u32 s36, s2, 160")
        a("s_lshr_b32 s37, s36, 3"); a("s_and_b32 s38, s36, 7")
        a("s_load_dwordx2 s[6:7], s[0:1], 0")
        a(f"v_and_b32 {v(T0)}, 7, {v(LANE)}")
        a(f"v_lshlrev_b32 {v(16)}, 4, {v(T0)}")
        a("s_lshl_b32 s8, s38, 7"); a(f"s_add_u32 s8, s8, {OBBASE + OB_MOD}")
        a(f"v_add_u32 {v(16)}, s8, {v(16)}")
        a("s_lshl_b32 s8, s37, 2"); a(f"s_sub_u32 s8, {255 - 40}, s8")
        offs = []
        for which in range(2):
            for ks in range(4):
                r = 17 + 4 * which + ks
                a(f"s_sub_u32 s9, s8, {60*which + ks}")
                a(f"s_mul_i32 s9, s9, {STRIDE}")
                a(f"v_add_u32 {v(r)}, s9, {v(16)}")
                offs.append(r)
        self.gather([(G + 4 * i, offs[i], 0, None) for i in range(8)], 4, 0x54, T0 + 1, sleep=2)
        self.sum4x4(G, 4); self.sum4x4(G + 16, 4)
        self.round4(G, T0 + 1); self.round4(G + 16, T0 + 1)
        for i in range(4):
            a(f"v_mov_b32 {v(GA+i)}, {v(G+i)}"); a(f"v_mov_b32 {v(GB+i)}, {v(G+16+i)}")
        a(f"v_lshrrev_b32 {v(T0+1)}, 2, {v(T0)}")
        a(f"v_mul_u32_u24 {v(T0+1)}, 1280, {v(T0+1)}")
        a(f"v_and_b32 {v(T0+2)}, 3, {v(T0)}")
        a(f"v_lshl_add_u32 {v(T0+1)}, {v(T0+2)}, 3, {v(T0+1)}")
        a("s_lshl_b32 s8, s36, 5")
        a(f"v_add_u32 {v(39)}, s8, {v(T0+1)}")
        a("s_waitcnt lgkmcnt(0)")
        a(f"global_load_dwordx2 {v(36,2)}, {v(39)}, s[6:7]")
        a("s_waitcnt vmcnt(0)")
        self.unpack(XR, XR + 1, 36); self.unpack(XR + 2, XR + 3, 37)
        a("s_branch L_h0_tail")
        a.label("L_h0_ffnmod")
        C1, SB = 24, 28
        a("s_mul_i32 s34, s2, 19"); a("s_lshr_b32 s34, s34, 9")
        a("s_mul_i32 s8, s34, 27"); a("s_sub_u32 s35, s2, s8")
        self.mod_gather_addr(16, LANE, T0)
        a("s_lshl_b32 s8, s34, 2"); a(f"s_sub_u32 s8, {255 - 60}, s8")
        offs = []
        for which in range(2):
            for ks in range(4):
                r = 17 + 4 * which + ks
                a(f"s_sub_u32 s9, s8, {20*which + ks}")
                a(f"s_mul_i32 s9, s9, {STRIDE}")
                a(f"v_add_u32 {v(r)}, s9, {v(16)}")
                offs.append(r)
        self.gather([(G + 4 * i, offs[i], 0, None) for i in range(8)], 4, 0x55, T0 + 1, sleep=2)
        self.sum4x4(G, 4); self.sum4x4(G + 16, 4)
        self.round4(G, T0 + 1); self.round4(G + 16, T0 + 1)
        for i in range(4):
            a(f"v_add_f32 {v(G+16+i)}, 1.0, {v(G+16+i)}")
        self.round4(G + 16, T0 + 1)
        for i in range(4):
            a(f"v_mov_b32 {v(SB+i)}, {v(G+i)}"); a(f"v_mov_b32 {v(C1+i)}, {v(G+16+i)}")
        a.label("L_h0_tail")
        self.h0_tail(GA, GB, XR, C1, SB)

    def h0_tail(self, GA, GB, XR, C1, SB):
        a, o = self.a, self.o
        LANE, VZ, T0 = 0, 1, 2
        G = 48
        AD = 40
        XW = 10
        a("s_cmp_ge_u32 s2, 160")
        a("s_cbranch_scc1 L_h0_redpre")
        a("s_and_b32 s8, s2, 31"); a("s_lshl_b32 s8, s8, 2")
        a(f"v_lshrrev_b32 {v(T0)}, 5, {v(LANE)}")
        a(f"v_lshlrev_b32 {v(T0+1)}, 7, {v(T0)}")
        a(f"v_add_u32 {v(T0+1)}, s8, {v(T0+1)}")
        a(f"v_mul_u32_u24 {v(T0+1)}, {STRIDE}, {v(T0+1)}")
        a(f"v_and_b32 {v(T0+2)}, 31, {v(LANE)}")
        a(f"v_lshl_add_u32 {v(T0+1)}, {v(T0+2)}, 4, {v(T0+1)}")
        for k in range(4):
            a(f"v_add_u32 {v(AD+k)}, {OBBASE + OB_OP + k*STRIDE}, {v(T0+1)}")
        a(f"v_lshlrev_b32 {v(XW)}, 8, {v(T0)}")
        a(f"v_lshl_add_u32 {v(XW)}, {v(T0+2)}, 3, {v(XW)}")
        self.ts(10)
        a("s_barrier")
        self.gather([(G + 4 * k, AD + k, 0, None) for k in range(4)], 4, 0x60, T0)
        self.sum4x4(G, 4)
        a(f"v_cvt_pk_bf16_f32 {v(8)}, {v(G)}, {v(G+1)}")
        a(f"v_cvt_pk_bf16_f32 {v(9)}, {v(G+2)}, {v(G+3)}")
        a(f"ds_write_b64 {v(XW)}, {v(8,2)} offset:{L_XO}")
        a("s_waitcnt lgkmcnt(0)")
        a("s_barrier")
        self.ts(11)
        a("s_cmp_ge_u32 s2, 135")
        a("s_cbranch_scc1 L_h0_end")
        a(f"v_bfe_u32 {v(T0)}, {v(LANE)}, 2, 3")
        a(f"v_mul_u32_u24 {v(T0)}, {STRIDE}, {v(T0)}")
        a(f"v_lshrrev_b32 {v(T0+1)}, 5, {v(LANE)}")
        a(f"v_lshl_add_u32 {v(T0)}, {v(T0+1)}, 5, {v(T0)}")
        a(f"v_and_b32 {v(T0+1)}, 3, {v(LANE)}")
        a(f"v_lshl_add_u32 {v(T0)}, {v(T0+1)}, 3, {v(T0)}")
        a("s_mov_b32 s9, s34")
        for i in range(5):
            a(f"s_mul_i32 s8, s9, {8*STRIDE}")
            a(f"s_add_u32 s8, s8, {OBBASE + OB_X1 + 160*STRIDE}")
            a(f"v_add_u32 {v(AD+i)}, s8, {v(T0)}")
            if i < 4:
                a("s_add_u32 s9, s9, 1"); a("s_cmp_eq_u32 s9, 5"); a("s_cselect_b32 s9, 0, s9")
        X, MU, RS, Y = G, 12, 13, 16
        self.gather([(X + 2 * i, AD + i, 0, None) for i in range(5)], 2, 0x61, T0)
        self.ts(12)
        self.ln_stats(X, MU, RS, T0)
        self.ln_apply(X, MU, RS, Y, T0)
        self.modulate(Y, C1, SB, T0)
        a(f"ds_write_b64 {v(XW)}, {v(T0,2)} offset:{L_XH2}")
        a("s_waitcnt lgkmcnt(0)")
        a("s_barrier")
        a(f"v_lshlrev_b32 {v(T0)}, 4, {v(LANE)}")
        a(f"s_mul_i32 s8, s35, {STRIDE}"); a(f"s_add_u32 s8, s8, {OBBASE + OB_GU}")
        for t in range(5):
            a(f"v_add_u32 {v(AD+t)}, s8, {v(T0)}")
            if t < 4:
                a(f"s_add_u32 s8, s8, {27*STRIDE}")
        a(f"v_bfe_u32 {v(T0)}, {v(LANE)}, 2, 1")
        a(f"v_lshlrev_b32 {v(XW)}, 7, {v(T0)}")
        a(f"v_bfe_u32 {v(T0)}, {v(LANE)}, 3, 2")
        a(f"v_lshl_add_u32 {v(XW)}, {v(T0)}, 5, {v(XW)}")
        a(f"v_and_b32 {v(T0)}, 3, {v(LANE)}")
        a(f"v_lshl_add_u32 {v(XW)}, {v(T0)}, 3, {v(XW)}")
        self.gather([(G + 4 * t, AD + t, 0, None) for t in range(5)], 4, 0x62, T0)
        self.ts(13)
        self.sum4x4(G, 5)
        self.round4(G, T0)
        U = G + 4
        for i in range(4):
            a(f"v_mov_b32 {v(U+i)}, {v(G+i)}")
        for i in range(4):
            a(f"v_permlane32_swap_b32 {v(G+i)}, {v(U+i)}")
        W = G + 8
        for i in range(4):
            a(f"v_mul_f32 {v(W+i)}, {v(G+i)}, {v(G+i)}")
        a("s_mov_b32 s8, 0x3d372713")
        for i in range(4):
            a(f"v_mul_f32 {v(W+i)}, s8, {v(W+i)}")
        for i in range(4):
            a(f"v_fma_f32 {v(W+i)}, {v(W+i)}, {v(G+i)}, {v(G+i)}")
        a("s_mov_b32 s8, 0xc0135761")
        for i in range(4):
            a(f"v_mul_f32 {v(W+i)}, s8, {v(W+i)}")
        for i in range(4):
            a(f"v_exp_f32 {v(W+i)}, {v(W+i)}")
        for i in range(4):
            a(f"v_add_f32 {v(W+i)}, 1.0, {v(W+i)}")
        for i in range(4):
            a(f"v_rcp_f32 {v(W+i)}, {v(W+i)}")
        for i in range(4):
            a(f"v_mul_f32 {v(G+i)}, {v(G+i)}, {v(W+i)}")
        self.round4(G, T0)
        for i in range(4):
            a(f"v_mul_f32 {v(G+i)}, {v(G+i)}, {v(U+i)}")
        a(f"v_cvt_pk_bf16_f32 {v(T0)}, {v(G)}, {v(G+1)}")
        a(f"v_cvt_pk_bf16_f32 {v(T0+1)}, {v(G+2)}, {v(G+3)}")
        a("s_mov_b32 exec_hi, 0")
        a(f"ds_write_b64 {v(XW)}, {v(T0,2)} offset:{L_XA}")
        a("s_waitcnt lgkmcnt(0)")
        a("s_mov_b64 exec, -1")
        a("s_barrier")
        self.ts(14)
        a("s_branch L_h0_end")

        a.label("L_h0_redpre")
        a("s_cmp_ge_u32 s2, 200")
        a("s_cbranch_scc1 L_h0_idle")
        a(f"v_lshrrev_b32 {v(T0)}, 3, {v(LANE)}")
        a(f"v_mul_u32_u24 {v(T0)}, {STRIDE}, {v(T0)}")
        a(f"v_and_b32 {v(T0+1)}, 7, {v(LANE)}")
        a(f"v_lshl_add_u32 {v(T0)}, {v(T0+1)}, 4, {v(T0)}")
        a("s_lshl_b32 s8, s38, 7")
        a(f"v_add_u32 {v(T0)}, s8, {v(T0)}")
        a(f"s_mul_i32 s8, s37, {32*STRIDE}"); a(f"s_add_u32 s8, s8, {OBBASE + OB_WO}")
        for k in range(4):
            a(f"v_add_u32 {v(AD+k)}, s8, {v(T0)}")
            if k < 3:
                a(f"s_add_u32 s8, s8, {8*STRIDE}")
        a(f"s_mul_i32 s8, s37, {27*STRIDE}"); a(f"s_add_u32 s8, s8, {OBBASE + OB_Y}")
        for k in range(4):
            a(f"v_add_u32 {v(AD+4+k)}, s8, {v(T0)}")
            if k < 3:
                a(f"s_add_u32 s8, s8, {8*STRIDE}")
        a(f"s_mul_i32 s8, s2, {STRIDE}"); a(f"s_add_u32 s8, s8, {OBBASE + OB_X1}")
        a(f"v_bfe_u32 {v(T0)}, {v(LANE)}, 2, 1")
        a(f"v_lshlrev_b32 {v(XW)}, 5, {v(T0)}")
        a(f"v_and_b32 {v(T0)}, 3, {v(LANE)}")
        a(f"v_lshl_add_u32 {v(XW)}, {v(T0)}, 3, {v(XW)}")
        a(f"v_add_u32 {v(XW)}, s8, {v(XW)}")
        a("s_load_dwordx2 s[6:7], s[0:1], 88")
        self.ts(10)
        a("s_barrier")

        def lane_reduce(r):
            for i in range(4):
                a(f"v_add_f32_dpp {v(r+i)}, {v(r+i)}, {v(r+i)} row_ror:8 row_mask:0xf bank_mask:0xf")
            for i in range(4):
                a(f"v_mov_b32 {v(r+4+i)}, {v(r+i)}")
            for i in range(4):
                a(f"v_permlane16_swap_b32 {v(r+i)}, {v(r+4+i)}")
            for i in range(4):
                a(f"v_add_f32 {v(r+i)}, {v(r+i)}, {v(r+4+i)}")
            for i in range(4):
                a(f"v_mov_b32 {v(r+4+i)}, {v(r+i)}")
            for i in range(4):
                a(f"v_permlane32_swap_b32 {v(r+i)}, {v(r+4+i)}")
            for i in range(4):
                a(f"v_add_f32 {v(r+i)}, {v(r+i)}, {v(r+4+i)}")

        def residual(r, gate):
            self.round4(r, T0)
            for i in range(4):
                a(f"v_mul_f32 {v(r+i)}, {v(r+i)}, {v(gate+i)}")
            self.round4(r, T0)
            for i in range(4):
                a(f"v_add_f32 {v(XR+i)}, {v(XR+i)}, {v(r+i)}")
            self.round4(XR, T0)

        self.gather([(G + 4 * k, AD + k, 0, None) for k in range(4)], 4, 0x63, T0)
        self.ts(11)
        self.sum4x4(G, 4)
        lane_reduce(G)
        residual(G, GA)
        a("s_mov_b64 exec, 0xff")
        a(f"global_store_dwordx2 {v(XW)}, {v(T0,2)}, s[4:5] sc1")
        a("s_mov_b64 exec, -1")
        self.ts(12)
        for i in range(4):
            a(f"v_mov_b32 {v(G+12+i)}, 0")
        self.gather([(G, AD + 4, 0, None), (G + 4, AD + 5, 0, None), (G + 8, AD + 6, 0, None),
                     (G + 12, AD + 7, 0, 0xFFFFFF)], 4, 0x64, T0)
        self.ts(13)
        self.sum4x4(G, 4)
        lane_reduce(G)
        residual(G, GB)
        a("s_waitcnt lgkmcnt(0)")
        a("s_mov_b64 exec, 0xff")
        a(f"global_store_dwordx2 {v(39)}, {v(T0,2)}, s[6:7]")
        a("s_mov_b64 exec, -1")
        self.ts(14)
        a("s_cmp_lg_u32 s2, 160")
        a("s_cbranch_scc1 L_h0_end")
        a(f"ds_read_b32 {v(T0)}, {v(VZ)} offset:{C_EP}")
        a("s_mov_b64 exec, 1")
        a("s_waitcnt lgkmcnt(0)")
        a(f"global_store_dword {v(VZ)}, {v(T0)}, s[4:5] sc1")
        a("s_branch L_h0_end")
        a.label("L_h0_idle")
        a("s_barrier")
        a.label("L_h0_end")
        self.epilogue_ts(15)
        a("s_endpgm")

    def build(self):
        a = self.a
        a("s_cmp_ge_u32 s2, 256")
        a("s_cbranch_scc1 L_exit")
        a("v_lshrrev_b32 v1, 6, v0")
        a("v_and_b32 v0, 63, v0")
        a("v_readfirstlane_b32 s3, v1")
        if self.o["prof"]:
            for i in range(60, 90):
                a(f"s_mov_b32 s{i}, 0")
        a("s_cmp_ge_u32 s3, 8")
        a("s_cbranch_scc1 L_helper")
        self.stream()
        self.helper()
        a.label("L_fail")
        a("s_load_dwordx2 s[12:13], s[0:1], 96")
        a("s_mov_b64 exec, 1")
        a("s_lshl_b32 s8, s2, 8"); a("s_or_b32 s8, s8, s19"); a("s_lshl_b32 s9, s3, 24"); a("s_or_b32 s8, s8, s9")
        a("v_mov_b32 v1, s8")
        a("s_and_b32 s9, s19, 0x3f"); a("s_lshl_b32 s9, s9, 2")
        a("v_mov_b32 v0, s9")
        a("s_waitcnt lgkmcnt(0)")
        a("global_store_dword v0, v1, s[12:13]")
        a.label("L_exit")
        body = fix_hazards(a.lines)
        hdr = open("cdna_kernels/" + NAME + ".s.ref").read().split("; Override launch geometry")[0]
        out = hdr
        out += "; Override launch geometry by editing the next line (default: block=256,\n"
        out += "; grid=ceil(out_elems/256), lds=0). Harness parses it; keep it on one line.\n"
        out += f"; @launch grid=(256,1,1) block=(768,1,1) lds={LDS_BYTES}\n"
        out += f""".amdgcn_target "amdgcn-amd-amdhsa--gfx950"
.text
.globl {KN}
.p2align 8
.type {KN},@function
{KN}:
"""
        for ln in body:
            out += (ln if ln.endswith(":") else "    " + ln) + "\n"
        out += f"""    s_endpgm
.section .rodata,"a"
.p2align 6
.amdhsa_kernel {KN}
  .amdhsa_next_free_vgpr 168
  .amdhsa_next_free_sgpr 102
  .amdhsa_accum_offset 168
  .amdhsa_group_segment_fixed_size 0
  .amdhsa_kernarg_size 112
  .amdhsa_user_sgpr_count 2
  .amdhsa_user_sgpr_kernarg_segment_ptr 1
  .amdhsa_system_sgpr_workgroup_id_x 1
.end_amdhsa_kernel
"""
        return out


if __name__ == "__main__":
    out = sys.argv[1]
    kw = eval("dict(" + (sys.argv[2] if len(sys.argv) > 2 else "") + ")")
    open(out, "w").write(Gen(**kw).build())
```
